```python
import torch

def _softmax(x, axis=-1):
    return torch.softmax(x, dim=axis)
def _gelu(x):
    return torch.nn.functional.gelu(x, approximate="tanh")
def _silu(x):
    return torch.nn.functional.silu(x)
def _sigmoid(x):
    return torch.sigmoid(x)
def _layernorm(x, axis=-1, eps=1e-5):
    m = x.mean(dim=axis, keepdim=True)
    v = x.var(dim=axis, keepdim=True, unbiased=False)
    return (x - m) / torch.sqrt(v + eps)
def _scatter_add(tgt, idx, src, axis=0):
    return tgt.clone().index_add_(axis, idx, src)
def _segment_sum(src, seg, n):
    out = torch.zeros((n,) + src.shape[1:], dtype=src.dtype)
    return out.index_add_(0, seg, src)
def _pad(x, pw):
    flat = tuple(v for pair in reversed(pw) for v in pair)
    return torch.nn.functional.pad(x, flat)

kernel_name = 'parallel_sum__sliding_block_cached__glu_gated_glu__decode'

def setup_inputs():

    _w = (lambda a: (lambda t: t.to(torch.bfloat16) if t.is_floating_point() else t)(torch.as_tensor(a)))
    def _A_setup():
        B, Sq, D = 2, 1, 512
        Hq, Hkv, Sk, Dh = 32, 32, 4096, 128
        assert Hq % Hkv == 0, (Hq, Hkv)
        return {
            "x": _w((lambda *s: torch.randn(*s, dtype=torch.bfloat16) * 0.05)(B, Sq, D)),
            "k_cache": _w((lambda *s: torch.randn(*s, dtype=torch.bfloat16) * 3.2)(B, Hkv, Sk, Dh)),
            "v_cache": _w((lambda *s: torch.randn(*s, dtype=torch.bfloat16) * 1.6)(B, Hkv, Sk, Dh)),
            "wq": _w((lambda *s: torch.randn(*s, dtype=torch.bfloat16) * 3.2)(D, Hq * Dh) * (D ** -0.5)),
            "wo": _w((lambda *s: torch.randn(*s, dtype=torch.bfloat16) * 1.6)(Hq * Dh, D) * ((Hq * Dh) ** -0.5)),
        }
    _A_in = _A_setup()

    def _B_setup():
        B, S, D, F = 2, 1, 512, 1376
        return {
            "x": _w((lambda *s: torch.randn(*s, dtype=torch.bfloat16) * 0.05)(B, S, D)),
            "w_gate": _w((lambda *s: torch.randn(*s, dtype=torch.bfloat16) * 0.2)(D, F)),
            "w_up": _w((lambda *s: torch.randn(*s, dtype=torch.bfloat16) * 0.05)(D, F)),
            "w_down": _w((lambda *s: torch.randn(*s, dtype=torch.bfloat16) * 0.05)(F, D)),
        }
    _B_in = _B_setup()

    return {
        "A_x": _A_in["x"],
        "A_k_cache": _A_in["k_cache"],
        "A_v_cache": _A_in["v_cache"],
        "A_wq": _A_in["wq"],
        "A_wo": _A_in["wo"],
        "B_x": _B_in["x"],
        "B_w_gate": _B_in["w_gate"],
        "B_w_up": _B_in["w_up"],
        "B_w_down": _B_in["w_down"],
    }

def reference(A_x, A_k_cache, A_v_cache, A_wq, A_wo, B_x, B_w_gate, B_w_up, B_w_down):
    def _A_ref(x, k_cache, v_cache, wq, wo):
        B, Sq, D = x.shape
        Hq, Dh = 32, 128
        Hkv, Sk = k_cache.shape[1], k_cache.shape[2]
        W = min(4096, max(256, Sk // 4))
        rep = Hq // Hkv
        q = (lambda x, *d: x.permute(*d))((x @ wq).reshape(B, Sq, Hq, Dh), 0, 2, 1, 3)
        k = (lambda x, n, axis: torch.repeat_interleave(x, n, dim=axis))(k_cache[:, :, Sk - W:, :], rep, axis=1)
        v = (lambda x, n, axis: torch.repeat_interleave(x, n, dim=axis))(v_cache[:, :, Sk - W:, :], rep, axis=1)
        scores = torch.einsum("bhqd,bhkd->bhqk", q, k) * (Dh ** -0.5)
        p = _softmax(scores, axis=-1)
        o = torch.einsum("bhqk,bhkd->bhqd", p, v)
        return (lambda x, *d: x.permute(*d))(o, 0, 2, 1, 3).reshape(B, Sq, Hq * Dh) @ wo

    def _B_ref(x, w_gate, w_up, w_down):
        g = torch.einsum("bsd,df->bsf", x, w_gate)
        u = torch.einsum("bsd,df->bsf", x, w_up)
        h = _sigmoid(g) * u
        return torch.einsum("bsf,fd->bsd", h, w_down)

    x = A_x
    xn = _layernorm(x, axis=-1)
    return x + _A_ref(xn, A_k_cache, A_v_cache, A_wq, A_wo) + _B_ref(xn, B_w_gate, B_w_up, B_w_down)
```

```python
import re

def _regs(tok):
    tok = tok.strip()
    neg = tok.startswith('-')
    if neg: tok = tok[1:]
    m = re.fullmatch(r'abs\((.*)\)', tok) or re.fullmatch(r'\|(.*)\|', tok)
    if m: tok = m.group(1)
    m = re.fullmatch(r'([vsa])(\d+)', tok)
    if m: return {(m.group(1), int(m.group(2)))}
    m = re.fullmatch(r'([vsa])\[(\d+):(\d+)\]', tok)
    if m: return {(m.group(1), i) for i in range(int(m.group(2)), int(m.group(3)) + 1)}
    if tok in ('vcc', 'vcc_lo', 'vcc_hi'): return {('vcc', 0)}
    if tok in ('exec', 'exec_lo', 'exec_hi'): return {('exec', 0)}
    if tok == 'm0': return {('m0', 0)}
    return set()

TRANS = ('v_exp_f32', 'v_log_f32', 'v_rcp_f32', 'v_rsq_f32', 'v_sqrt_f32', 'v_sin_f32', 'v_cos_f32')

class Ins:
    def __init__(self, text):
        self.text = text
        t = text.split(';')[0].strip()
        self.is_label = t.endswith(':')
        self.is_dir = t.startswith('.')
        self.op = t.split()[0] if t else ''
        rest = t[len(self.op):].strip()
        ops = []; depth = 0; cur = ''
        for ch in rest:
            if ch == '[': depth += 1
            if ch == ']': depth -= 1
            if ch == ',' and depth == 0:
                ops.append(cur.strip()); cur = ''
            else:
                cur += ch
        if cur.strip(): ops.append(cur.strip())
        self.mods = ''
        if ops:
            parts = ops[-1].split()
            ops[-1] = parts[0]
            self.mods = ' '.join(parts[1:])
        self.ops = ops
        op = self.op
        self.valu = op.startswith('v_')
        self.mfma = op.startswith('v_mfma')
        self.dot = op.startswith('v_dot')
        self.trans = any(op.startswith(x) for x in TRANS)
        self.dpp = '_dpp' in op or any(k in self.mods for k in ('row_', 'quad_perm', 'wave_'))
        self.permlane = op.startswith('v_permlane')
        self.vmem = op.startswith(('buffer_', 'global_', 'flat_'))
        self.ds = op.startswith('ds_')
        self.salu = op.startswith('s_')
        self.w = set(); self.r = set()
        if self.is_label or self.is_dir or not op: return
        R = [_regs(o) for o in ops]
        if self.valu:
            if op.startswith('v_cmp'):
                self.w |= R[0]
                for x in R[1:]: self.r |= x
                if op.startswith('v_cmpx'): self.w |= {('exec', 0)}
            elif self.permlane:
                self.w |= R[0] | R[1]; self.r |= R[0] | R[1]
            else:
                self.w |= R[0]
                for x in R[1:]: self.r |= x
                if op.startswith(('v_fmac', 'v_dot2c', 'v_mac')) or self.dpp: self.r |= R[0]
                if op.startswith(('v_add_co', 'v_sub_co', 'v_addc_co', 'v_div_scale')):
                    self.w |= R[1]
                if op.startswith('v_div_fmas'): self.r |= {('vcc', 0)}
        elif self.vmem:
            if 'store' in op or 'atomic' in op:
                for x in R: self.r |= x
            elif 'lds' in self.mods.split() or '_lds_' in op:
                for x in R: self.r |= x
                self.r |= {('m0', 0)}
            else:
                self.w |= R[0]
                for x in R[1:]: self.r |= x
        elif self.ds:
            if op.startswith(('ds_read', 'ds_bpermute', 'ds_permute', 'ds_swizzle')):
                self.w |= R[0]
                for x in R[1:]: self.r |= x
            else:
                for x in R: self.r |= x
        elif self.salu:
            if op.startswith(('s_cmp', 's_cbranch', 's_branch', 's_waitcnt', 's_nop', 's_barrier', 's_endpgm', 's_setprio', 's_sleep', 's_bitcmp')):
                for x in R: self.r |= x
            else:
                if R: self.w |= R[0]
                for x in R[1:]: self.r |= x
                if 'saveexec' in op: self.w |= {('exec', 0)}
    def states(self):
        if self.is_label or self.is_dir or not self.op: return 0
        if self.op == 's_nop': return int(self.ops[0], 0) + 1
        return 1

def mfma_passes(op):
    if '16x16x32' in op or '16x16x16' in op: return 4
    if '32x32x16' in op or '32x32x8' in op: return 8
    if '16x16x4_f32' in op: return 8
    if '32x32x2_f32' in op: return 16
    if '4x4x' in op: return 2
    return 16

def need(p, c):
    n = 0
    vw = {x for x in p.w if x[0] in 'va' and x[0] != 'vcc'}
    sw = {x for x in p.w if x[0] in ('s', 'vcc')}
    if p.mfma:
        ps = mfma_passes(p.op)
        sgemm = p.op.endswith('_f32') and 'bf16' not in p.op and 'f16' not in p.op
        D = vw
        if c.mfma:
            cC = _regs(c.ops[3]); cAB = _regs(c.ops[1]) | _regs(c.ops[2])
            if D & cAB: n = max(n, {2:5,4:8,8:12,16:20}[ps])
            if D & cC:
                if cC == D and mfma_passes(c.op) == ps: n = max(n, 2 if ps == 2 else 0)
                else: n = max(n, {2:4,4:6,8:10,16:18}[ps])
            elif D & c.w: n = max(n, {2:5,4:8,8:12,16:20}[ps])
        elif (c.valu or c.vmem or c.ds) and (D & (c.r | c.w)):
            n = max(n, {2:5,4:8,8:12,16:20}[ps])
        if c.valu and not c.mfma and (_regs(p.ops[3]) & c.w): n = max(n, {2:1,4:3,8:7,16:15}[ps])
        return n
    if p.valu:
        if p.dot and vw & (c.r | c.w):
            if c.op == p.op and not (vw & (c.r - c.w)) : n = max(n, 0)
            elif c.op == p.op and (vw & c.w) and len(c.ops) >= 3 and not (vw & (_regs(c.ops[1]) | _regs(c.ops[2]))): n = max(n, 0)
            else: n = max(n, 3)
        if c.mfma and vw & c.r: n = max(n, 2)
        if c.dpp and vw & c.r: n = max(n, 2)
        if c.permlane and vw & c.r: n = max(n, 2)
        if p.trans and c.valu and not c.trans and vw & c.r: n = max(n, 1)
        if c.op.startswith(('v_readlane', 'v_readfirstlane')) and vw & c.r: n = max(n, 1)
        if sw:
            if c.vmem and sw & c.r: n = max(n, 5)
            if c.valu and sw & c.r: n = max(n, 4 if c.op.startswith(('v_readlane','v_writelane','v_div_fmas')) else 2)
        if ('exec', 0) in p.w:
            if c.dpp: n = max(n, 5)
            if c.mfma or c.permlane or c.op.startswith(('v_readlane','v_readfirstlane','v_writelane')): n = max(n, 4)
        if 'op_sel' in p.mods and c.valu and vw & c.r and not p.op.startswith('v_pk'): n = max(n, 1)
    if p.vmem and 'store' in p.op and ('x4' in p.op or 'x3' in p.op):
        data = set()
        for o in p.ops:
            rr = _regs(o)
            if len([x for x in rr if x[0] == 'v']) >= 3: data |= rr
        if data & c.w: n = max(n, 2)
    if p.salu and ('m0', 0) in p.w and ('m0', 0) in c.r: n = max(n, 1)
    return n

class Asm:
    def __init__(self):
        self.L = []
    def __call__(self, s):
        for line in s.strip('\n').split('\n'):
            line = line.strip()
            if line: self.L.append(line)
    def finish(self):
        out = []
        hist = []
        for text in self.L:
            if text.startswith(';'):
                out.append(text); continue
            ins = Ins(text)
            if not (ins.is_label or ins.is_dir):
                dist = 0; req = 0
                for p in reversed(hist):
                    if dist >= 20: break
                    k = need(p, ins)
                    if k > dist: req = max(req, k - dist)
                    dist += p.states()
                while req > 0:
                    k = min(req, 16)
                    nop = Ins(f's_nop {k-1}')
                    out.append('    ' + nop.text); hist.append(nop); req -= k
            hist.append(ins)
            out.append(text if (ins.is_label or ins.is_dir) else '    ' + text)
        return '\n'.join(out) + '\n'
```

```python
import sys
from asmlib import Asm
NAME = "parallel_sum__sliding_block_cached__glu_gated_glu__decode"

QP = 0x10000; GP = 0x60000; OP = 0xA0000; YA = 0xE0000; YF = 0x120000; WS_USED = 0x140000
L_Q = 0; L_M = 256; L_L = 288; L_A0 = 320; L_A1 = 576; L_O = 1024; LDS_BYTES = 1024 + 4096
NST = 12

def gen(fn, stamps=False, spin_max=200000, kvpol=" nt", wpol=" nt"):
    A = Asm()
    hdr = open("cdna_kernels/%s.s.ref" % NAME).read().split("\n")
    head = [l for l in hdr if l.startswith(";") and "@launch" not in l and "Override" not in l and "grid=ceil" not in l]
    pre = "\n".join(head) + f"\n; @launch grid=(256,1,1) block=(640,1,1) lds={LDS_BYTES}\n"
    pre += f'.amdgcn_target "amdgcn-amd-amdhsa--gfx950"\n.text\n.globl {NAME}_kernel\n.p2align 8\n.type {NAME}_kernel,@function\n{NAME}_kernel:\n'
    def stamp(i):
        if stamps: A(f"s_memrealtime s[{64+2*i}:{65+2*i}]")
    stamp(0)
    A("""
    s_load_dwordx16 s[4:19], s[0:1], 0
    s_load_dwordx8 s[20:27], s[0:1], 64
    s_cmp_ge_u32 s2, 256
    s_cbranch_scc1 L_end
    v_lshrrev_b32 v1, 6, v0
    v_and_b32 v0, 63, v0
    v_readfirstlane_b32 s3, v1
    s_and_b32 s40, s2, 7
    s_lshr_b32 s41, s2, 3
    s_lshl_b32 s40, s40, 2
    s_lshr_b32 s42, s41, 3
    s_add_u32 s40, s40, s42
    s_and_b32 s41, s41, 7
    """)
    A("""
    s_cmp_lt_u32 s3, 2
    s_cbranch_scc1 L_wrole
    """)
    A("""
    s_setprio 2
    s_lshr_b32 s42, s41, 2
    s_lshl_b32 s42, s42, 25
    s_lshl_b32 s43, s40, 20
    s_add_u32 s42, s42, s43
    s_and_b32 s43, s41, 3
    s_lshl_b32 s43, s43, 16
    s_add_u32 s42, s42, s43
    s_sub_u32 s3, s3, 2
    s_lshl_b32 s43, s3, 13
    s_add_u32 s42, s42, s43
    s_add_u32 s42, s42, 0xC0000
    s_add_u32 s43, s42, 4096
    v_lshlrev_b32 v1, 4, v0
    s_mov_b32 s30, 0x4000000
    s_mov_b32 s31, 0x20000
    s_mov_b32 s34, 0x4000000
    s_mov_b32 s35, 0x20000
    s_waitcnt lgkmcnt(0)
    s_mov_b32 s28, s6
    s_mov_b32 s29, s7
    s_mov_b32 s32, s8
    s_mov_b32 s33, s9
    """)
    for t in range(8):
        A(f"buffer_load_dwordx4 v[{16+4*t}:{19+4*t}], v1, s[28:31], s{42 + t//4} offen offset:{(t%4)*1024}{kvpol}")
    A("s_setprio 1")
    for t in range(8):
        A(f"buffer_load_dwordx4 v[{48+4*t}:{51+4*t}], v1, s[32:35], s{42 + t//4} offen offset:{(t%4)*1024}{kvpol}")
    stamp(1)
    def selectors():
        A("""
        v_and_b32 v2, 1, v0
        v_cmp_eq_u32 vcc, 1, v2
        v_mov_b32 v3, 0x0c0c0100
        v_mov_b32 v4, 0x01000c0c
        v_cndmask_b32 v3, v3, v4, vcc
        v_mov_b32 v4, 0x0c0c0302
        v_mov_b32 v5, 0x03020c0c
        v_cndmask_b32 v4, v4, v5, vcc
        v_bfe_u32 v2, v0, 1, 2
        v_mov_b32 v5, 0x0c0c0c0c
        """)
        for r in range(4):
            A(f"v_cmp_eq_u32 vcc, {r}, v2")
            A(f"v_cndmask_b32 v{8+r}, v5, v3, vcc")
            A(f"v_cndmask_b32 v{12+r}, v5, v4, vcc")
    selectors()
    A("""
    v_and_b32 v2, 15, v0
    v_lshlrev_b32 v2, 4, v2
    s_barrier
    """)
    stamp(2)
    A(f"ds_read_b128 v[4:7], v2 offset:{L_Q}")
    for t in range(8):
        A(f"v_mov_b32 v{80+t}, 0")
    A("s_waitcnt lgkmcnt(0)")
    for t in range(8):
        A(f"s_waitcnt vmcnt({15-t})")
        for r in range(4):
            A(f"v_dot2c_f32_bf16 v{80+t}, v{16+4*t+r}, v{4+r}")
    for sh in (8, 4, 2, 1):
        for t in range(8):
            A(f"v_add_f32_dpp v{80+t}, v{80+t}, v{80+t} row_ror:{sh} row_mask:0xf bank_mask:0xf")
    A("s_mov_b32 s44, 0x3db504f3")
    A("s_mov_b32 s45, 0xffff0000")
    A("s_mov_b32 s46, 0x3fb8aa3b")
    for u in range(4):
        A(f"v_cvt_pk_bf16_f32 v{16+u}, v{80+2*u}, v{81+2*u}")
    for u in range(4):
        A(f"v_lshlrev_b32 v{80+2*u}, 16, v{16+u}")
        A(f"v_and_b32 v{81+2*u}, s45, v{16+u}")
    for t in range(8):
        A(f"v_mul_f32 v{80+t}, s44, v{80+t}")
    for u in range(4):
        A(f"v_cvt_pk_bf16_f32 v{16+u}, v{80+2*u}, v{81+2*u}")
    for u in range(4):
        A(f"v_lshlrev_b32 v{80+2*u}, 16, v{16+u}")
        A(f"v_and_b32 v{81+2*u}, s45, v{16+u}")
    A("""
    v_max3_f32 v16, v80, v81, v82
    v_max3_f32 v17, v83, v84, v85
    v_max3_f32 v16, v16, v86, v87
    v_max_f32 v16, v16, v17
    v_mov_b32 v17, v16
    v_permlane16_swap_b32 v16, v17
    v_max_f32 v16, v16, v17
    v_mov_b32 v17, v16
    v_permlane32_swap_b32 v16, v17
    v_max_f32 v16, v16, v17
    s_lshl_b32 s47, s3, 2
    v_mov_b32 v3, s47
    """)
    A(f"ds_write_b32 v3, v16 offset:{L_M}")
    A("""
    v_mov_b32 v2, 0
    s_waitcnt lgkmcnt(0)
    s_barrier
    """)
    stamp(3)
    A(f"ds_read_b128 v[16:19], v2 offset:{L_M}")
    A(f"ds_read_b128 v[20:23], v2 offset:{L_M+16}")
    A("""
    s_waitcnt lgkmcnt(0)
    v_max3_f32 v16, v16, v17, v18
    v_max3_f32 v20, v20, v21, v22
    v_max3_f32 v16, v16, v19, v23
    v_max_f32 v16, v16, v20
    """)
    for t in range(8):
        A(f"v_sub_f32 v{80+t}, v{80+t}, v16")
    for t in range(8):
        A(f"v_mul_f32 v{80+t}, s46, v{80+t}")
    for t in range(8):
        A(f"v_exp_f32 v{80+t}, v{80+t}")
    for u in range(4):
        A(f"v_cvt_pk_bf16_f32 v{20+u}, v{80+2*u}, v{81+2*u}")
    A("""
    v_add_f32 v16, v80, v81
    v_add_f32 v17, v82, v83
    v_add_f32 v18, v84, v85
    v_add_f32 v19, v86, v87
    v_add_f32 v16, v16, v17
    v_add_f32 v18, v18, v19
    v_add_f32 v16, v16, v18
    v_mov_b32 v17, v16
    v_permlane16_swap_b32 v16, v17
    v_add_f32 v16, v16, v17
    v_mov_b32 v17, v16
    v_permlane32_swap_b32 v16, v17
    v_add_f32 v16, v16, v17
    """)
    A(f"ds_write_b32 v3, v16 offset:{L_L}")
    for r in range(4): A(f"v_mov_b32 v{24+r}, 0")
    A("""
    v_and_b32 v2, 15, v0
    v_lshlrev_b32 v2, 5, v2
    v_and_b32 v4, 16, v0
    v_add_u32 v2, v2, v4
    s_lshl_b32 s47, s3, 9
    v_add_u32 v2, s47, v2
    """)
    def perms(t, P0, Ab):
        for r in range(4):
            A(f"v_perm_b32 v{Ab+r}, v{P0 + t//2}, v{P0 + t//2}, v{(8 if t%2==0 else 12)+r}")
    perms(0, 20, 28)
    for t in range(8):
        if t < 7: perms(t+1, 20, 28 + 4*((t+1)%2))
        A(f"s_waitcnt vmcnt({7-t})")
        A(f"v_mfma_f32_16x16x32_bf16 v[24:27], v[{28+4*(t%2)}:{31+4*(t%2)}], v[{48+4*t}:{51+4*t}], v[24:27]")
    A("s_mov_b32 exec_hi, 0")
    A(f"ds_write_b128 v2, v[24:27] offset:{L_O}")
    A("s_waitcnt lgkmcnt(0)")
    stamp(4)
    A("s_barrier")
    if stamps:
        A("""
        s_cmp_eq_u32 s3, 7
        s_cbranch_scc0 L_end
        s_waitcnt lgkmcnt(0)
        """)
        A(f"s_mul_i32 s47, s2, {NST*8}")
        A("s_add_u32 s47, s47, 0x8000000")
        A("v_mov_b32 v1, s47")
        for k, i in enumerate((1, 2, 3, 4)):
            A(f"v_mov_b32 v2, s{64+2*i}"); A(f"v_mov_b32 v3, s{65+2*i}")
            A(f"global_store_dwordx2 v1, v[2:3], s[26:27] offset:{(8+k)*8}")
    A("s_endpgm")
    A("""
    L_wrole:
    s_setprio 3
    s_mov_b32 s48, 0
    s_mov_b32 s30, 2048
    s_mov_b32 s31, 0x20000
    s_mov_b32 s35, 0x20000
    s_mov_b32 s39, 0x20000
    """)
    A(f"s_mov_b32 s38, {WS_USED}")
    A("""
    v_lshrrev_b32 v4, 4, v0
    v_and_b32 v5, 15, v0
    v_lshlrev_b32 v100, 5, v0
    s_cmp_eq_u32 s3, 0
    s_cbranch_scc0 L_fsetup
    s_movk_i32 s49, 8192
    s_lshl_b32 s54, s41, 6
    s_lshl_b32 s50, s41, 19
    s_lshl_b32 s42, s40, 8
    s_add_u32 s50, s50, s42
    s_lshl_b32 s51, s40, 13
    s_lshl_b32 s42, s41, 10
    s_add_u32 s51, s51, s42
    """)
    A(f"s_add_u32 s51, s51, {QP}")
    A("""
    s_movk_i32 s55, 512
    s_mov_b32 s34, 0x400000
    s_waitcnt lgkmcnt(0)
    s_mov_b32 s32, s10
    s_mov_b32 s33, s11
    s_branch L_wcommon
    L_fsetup:
    s_movk_i32 s49, 2752
    s_bfe_u32 s42, s2, 0x30001
    s_lshl_b32 s54, s42, 6
    s_mul_i32 s50, s54, 2752
    s_lshr_b32 s43, s2, 4
    s_lshl_b32 s44, s43, 8
    s_add_u32 s50, s50, s44
    s_and_b32 s44, s2, 1
    s_lshl_b32 s44, s44, 3
    s_add_u32 s44, s44, s42
    s_mul_i32 s51, s44, 11264
    s_lshl_b32 s44, s43, 9
    s_add_u32 s51, s51, s44
    """)
    A(f"s_add_u32 s51, s51, {GP}")
    A("""
    s_movk_i32 s55, 5632
    s_mov_b32 s34, 1409024
    s_waitcnt lgkmcnt(0)
    s_bitcmp1_b32 s2, 0
    s_cselect_b32 s32, s18, s16
    s_cselect_b32 s33, s19, s17
    L_wcommon:
    s_load_dword s52, s[26:27], 0
    s_mov_b32 s28, s4
    s_mov_b32 s29, s5
    s_mov_b32 s36, s26
    s_mov_b32 s37, s27
    s_lshl_b32 s42, s49, 4
    v_mul_lo_u32 v1, v4, s42
    v_lshl_add_u32 v1, v5, 4, v1
    """)
    A("""
    s_cmp_eq_u32 s3, 0
    s_cbranch_scc1 L_dox
    s_cmp_lt_u32 s2, 176
    s_cbranch_scc1 L_dox
    s_mov_b32 s48, 2
    s_branch L_consts
    L_dox:
    buffer_load_dwordx4 v[104:107], v100, s[28:31], 0 offen
    buffer_load_dwordx4 v[108:111], v100, s[28:31], 0 offen offset:16
    v_lshrrev_b32 v101, 5, v0
    v_and_b32 v102, 31, v0
    v_lshlrev_b32 v101, 10, v101
    v_lshl_add_u32 v101, v102, 2, v101
    s_lshl_b32 s42, s54, 1
    buffer_load_dword v103, v101, s[28:31], s42 offen
    L_issue:
    """)
    for t in range(16):
        A(f"buffer_load_dwordx4 v[{16+4*t}:{19+4*t}], v1, s[32:35], s50 offen{wpol}")
        if t < 15: A("s_add_u32 s50, s50, s49")
    A("""
    s_cmp_eq_u32 s48, 1
    s_cbranch_scc1 L_phase1
    L_consts:
    """)
    A("""
    v_mov_b32 v112, v4
    v_mov_b32 v113, v5
    """)
    selectors()
    A("""
    v_mov_b32 v7, 0xff
    s_lshl_b32 s42, s3, 8
    v_lshlrev_b32 v3, 2, v0
    v_add_u32 v3, s42, v3
    v_lshrrev_b32 v6, 3, v113
    v_lshlrev_b32 v6, 7, v6
    v_lshl_add_u32 v6, v112, 5, v6
    v_add_u32 v6, s42, v6
    v_lshrrev_b32 v4, 1, v112
    v_mul_lo_u32 v2, v4, s55
    v_lshl_add_u32 v2, v113, 5, v2
    v_and_b32 v4, 16, v0
    v_add_u32 v2, v2, v4
    s_mov_b32 s45, 0xffff0000
    s_mov_b32 s46, 0x3fb8aa3b
    s_waitcnt lgkmcnt(0)
    s_add_u32 s56, s52, 1
    s_and_b32 s52, s56, 0xff
    s_cmp_eq_u32 s48, 2
    s_cbranch_scc1 L_post0
    """)
    A("""
    v_mov_b32 v114, 0x3f803f80
    v_mov_b32 v115, 0
    s_waitcnt vmcnt(17)
    """)
    for k in range(8): A(f"v_dot2c_f32_bf16 v115, v{104+k}, v114")
    def allred32(v, tmp):
        for sh in (8, 4, 2, 1):
            A(f"v_add_f32_dpp v{v}, v{v}, v{v} row_ror:{sh} row_mask:0xf bank_mask:0xf")
        A(f"v_mov_b32 v{tmp}, v{v}")
        A(f"v_permlane16_swap_b32 v{v}, v{tmp}")
        A(f"v_add_f32 v{v}, v{v}, v{tmp}")
    allred32(115, 116)
    A("""
    v_mul_f32 v115, 0x3b000000, v115
    v_mov_b32 v117, 0
    v_mov_b32 v120, 0
    """)
    for k in range(8):
        A(f"v_lshlrev_b32 v118, 16, v{104+k}")
        A(f"v_and_b32 v119, s45, v{104+k}")
        A("v_sub_f32 v118, v118, v115")
        A("v_sub_f32 v119, v119, v115")
        A("v_fmac_f32 v117, v118, v118")
        A("v_fmac_f32 v120, v119, v119")
    A("v_add_f32 v117, v117, v120")
    allred32(117, 116)
    A("""
    v_mul_f32 v117, 0x3b000000, v117
    v_cvt_pk_bf16_f32 v116, v115, v117
    v_lshlrev_b32 v115, 16, v116
    v_and_b32 v117, s45, v116
    v_add_f32 v117, 0x3727c5ac, v117
    v_cvt_pk_bf16_f32 v117, v117, v117
    v_and_b32 v117, s45, v117
    v_sqrt_f32 v117, v117
    v_cvt_pk_bf16_f32 v117, v117, v117
    v_and_b32 v117, s45, v117
    v_rcp_f32 v116, v117
    s_waitcnt vmcnt(16)
    v_lshlrev_b32 v118, 16, v103
    v_and_b32 v119, s45, v103
    v_sub_f32 v118, v118, v115
    v_sub_f32 v119, v119, v115
    v_cvt_pk_bf16_f32 v118, v118, v119
    v_and_b32 v119, s45, v118
    v_lshlrev_b32 v118, 16, v118
    v_mul_f32 v120, v118, v116
    v_mul_f32 v121, v119, v116
    v_fma_f32 v118, -v120, v117, v118
    v_fma_f32 v119, -v121, v117, v119
    v_fmac_f32 v120, v118, v116
    v_fmac_f32 v121, v119, v116
    v_cvt_pk_bf16_f32 v120, v120, v121
    """)
    A("L_core:")
    A(f"ds_write_b32 v3, v120 offset:{L_A0}")
    for r in range(4): A(f"v_mov_b32 v{96+r}, 0")
    A("s_waitcnt lgkmcnt(0)")
    A(f"ds_read_b128 v[80:83], v6 offset:{L_A0}")
    A(f"ds_read_b128 v[84:87], v6 offset:{L_A0+16}")
    A("s_waitcnt lgkmcnt(0)")
    perms(0, 80, 88)
    for t in range(16):
        if t < 15: perms(t+1, 80, 88 + 4*((t+1)%2))
        A(f"s_waitcnt vmcnt({15-t})")
        A(f"v_mfma_f32_16x16x32_bf16 v[96:99], v[{88+4*(t%2)}:{91+4*(t%2)}], v[{16+4*t}:{19+4*t}], v[96:99]")
    for r in range(4): A(f"v_bfi_b32 v{96+r}, v7, s52, v{96+r}")
    A("buffer_store_dwordx4 v[96:99], v2, s[36:39], s51 offen sc1")
    A("""
    s_cmp_eq_u32 s48, 1
    s_cbranch_scc1 L_post1
    L_post0:
    s_cmp_eq_u32 s3, 0
    s_cbranch_scc0 L_fpost0
    """)
    stamp(1)
    def tagcheck(regs, label, acc=126):
        first = True
        for r in regs:
            if first:
                A(f"v_xor_b32 v{acc}, s52, v{r}"); first = False
            else:
                A(f"v_bitop3_b32 v{acc}, v{r}, s52, v{acc} bitop3:0xbe")
        A(f"v_and_b32 v{acc}, v7, v{acc}")
        A(f"v_cmp_ne_u32 vcc, 0, v{acc}")
        A("s_sub_u32 s53, s53, 1")
        A(f"s_cbranch_scc1 {label}_done")
        A(f"s_cbranch_vccnz {label}")
        A(f"{label}_done:")
    A("""
    v_lshrrev_b32 v100, 5, v0
    v_and_b32 v101, 31, v0
    v_lshlrev_b32 v102, 10, v100
    v_lshl_add_u32 v102, v101, 4, v102
    v_add_u32 v103, 4096, v102
    s_lshl_b32 s42, s40, 13
    s_lshr_b32 s43, s41, 2
    s_lshl_b32 s43, s43, 9
    s_add_u32 s42, s42, s43
    """)
    A(f"s_add_u32 s42, s42, {QP}")
    A(f"s_mov_b32 s53, {spin_max}")
    A("""
    L_qpoll:
    buffer_load_dwordx4 v[104:107], v102, s[36:39], s42 offen sc1
    buffer_load_dwordx4 v[108:111], v102, s[36:39], s42 offen offset:2048 sc1
    buffer_load_dwordx4 v[112:115], v103, s[36:39], s42 offen sc1
    buffer_load_dwordx4 v[116:119], v103, s[36:39], s42 offen offset:2048 sc1
    s_waitcnt vmcnt(0)
    """)
    tagcheck(range(104, 120), "L_qpoll")
    for r in range(4):
        A(f"v_add_f32 v{104+r}, v{104+r}, v{108+r}")
        A(f"v_add_f32 v{112+r}, v{112+r}, v{116+r}")
    for r in range(4):
        A(f"v_add_f32 v{104+r}, v{104+r}, v{112+r}")
    A("""
    v_permlane32_swap_b32 v104, v106
    v_permlane32_swap_b32 v105, v107
    v_add_f32 v104, v104, v106
    v_add_f32 v105, v105, v107
    v_lshlrev_b32 v101, 3, v101
    v_lshl_add_u32 v101, v100, 2, v101
    v_cvt_pk_bf16_f32 v104, v104, v105
    """)
    A(f"ds_write_b32 v101, v104 offset:{L_Q}")
    A("""
    v_lshrrev_b32 v100, 4, v0
    v_and_b32 v101, 1, v100
    v_lshrrev_b32 v100, 1, v100
    v_lshl_add_u32 v100, v101, 1, v100
    s_lshl_b32 s42, s2, 3
    v_lshl_add_u32 v127, v100, 1, s42
    buffer_load_ushort v125, v127, s[28:31], 0 offen
    """)
    A("""
    s_lshl_b32 s50, s40, 17
    s_and_b32 s42, s41, 1
    s_lshl_b32 s43, s42, 16
    s_add_u32 s50, s50, s43
    s_lshr_b32 s43, s41, 1
    s_lshl_b32 s44, s43, 8
    s_add_u32 s50, s50, s44
    s_lshl_b32 s51, s43, 16
    s_lshl_b32 s44, s40, 11
    s_add_u32 s51, s51, s44
    s_lshl_b32 s44, s42, 10
    s_add_u32 s51, s51, s44
    """)
    A(f"s_add_u32 s51, s51, {YA}")
    A("""
    s_mov_b32 s32, s12
    s_mov_b32 s33, s13
    s_waitcnt lgkmcnt(0)
    """)
    stamp(2)
    A("""
    s_branch L_toph1
    L_fpost0:
    s_cmp_lt_u32 s2, 168
    s_cbranch_scc1 L_end
    s_sub_u32 s42, s2, 168
    s_lshr_b32 s54, s42, 2
    s_and_b32 s43, s42, 3
    s_lshl_b32 s50, s54, 16
    s_lshl_b32 s44, s43, 8
    s_add_u32 s50, s50, s44
    s_mul_i32 s51, s43, 22
    s_add_u32 s51, s51, s54
    s_lshl_b32 s51, s51, 10
    """)
    A(f"s_add_u32 s51, s51, {YF}")
    A("""
    s_mov_b32 s32, s20
    s_mov_b32 s33, s21
    L_toph1:
    s_mov_b32 s48, 1
    s_movk_i32 s49, 1024
    v_lshrrev_b32 v4, 4, v0
    v_and_b32 v5, 15, v0
    v_lshlrev_b32 v1, 14, v4
    v_lshl_add_u32 v1, v5, 4, v1
    v_lshrrev_b32 v4, 1, v4
    v_lshlrev_b32 v2, 9, v4
    v_lshl_add_u32 v2, v5, 5, v2
    v_and_b32 v4, 16, v0
    v_add_u32 v2, v2, v4
    s_barrier
    s_branch L_issue
    L_phase1:
    s_barrier
    s_cmp_eq_u32 s3, 0
    s_cbranch_scc0 L_fphase1
    v_mov_b32 v100, 0
    """)
    stamp(3)
    A(f"ds_read_b128 v[104:107], v100 offset:{L_M}")
    A(f"ds_read_b128 v[108:111], v100 offset:{L_M+16}")
    A("""
    v_lshlrev_b32 v101, 3, v0
    v_lshlrev_b32 v102, 4, v0
    s_lshl_b32 s42, s40, 13
    s_lshl_b32 s43, s41, 10
    """)
    A(f"s_add_u32 s42, s42, {OP}")
    A("""
    s_add_u32 s43, s43, s42
    s_and_b32 s44, s41, 1
    s_lshl_b32 s44, s44, 9
    s_add_u32 s42, s42, s44
    v_lshrrev_b32 v103, 5, v0
    v_and_b32 v121, 31, v0
    v_lshlrev_b32 v103, 12, v103
    v_lshl_add_u32 v103, v121, 4, v103
    s_waitcnt lgkmcnt(0)
    v_max3_f32 v104, v104, v105, v106
    v_max3_f32 v108, v108, v109, v110
    v_max3_f32 v104, v104, v107, v111
    v_max_f32 v98, v104, v108
    v_bfi_b32 v98, v7, s52, v98
    """)
    A(f"s_mov_b32 s53, {spin_max}")
    A("s_barrier")
    stamp(4)
    for k in range(8):
        A(f"ds_read_b64 v[{104+2*k}:{105+2*k}], v101 offset:{L_O + 512*k}")
    A(f"ds_read_b128 v[80:83], v100 offset:{L_L}")
    A(f"ds_read_b128 v[84:87], v100 offset:{L_L+16}")
    A("s_waitcnt lgkmcnt(0)")
    A("""
    v_pk_add_f32 v[104:105], v[104:105], v[106:107]
    v_pk_add_f32 v[108:109], v[108:109], v[110:111]
    v_pk_add_f32 v[112:113], v[112:113], v[114:115]
    v_pk_add_f32 v[116:117], v[116:117], v[118:119]
    v_pk_add_f32 v[80:81], v[80:81], v[82:83]
    v_pk_add_f32 v[84:85], v[84:85], v[86:87]
    v_pk_add_f32 v[104:105], v[104:105], v[108:109]
    v_pk_add_f32 v[112:113], v[112:113], v[116:117]
    v_pk_add_f32 v[80:81], v[80:81], v[84:85]
    v_pk_add_f32 v[96:97], v[104:105], v[112:113]
    v_add_f32 v99, v80, v81
    v_bfi_b32 v96, v7, s52, v96
    v_bfi_b32 v97, v7, s52, v97
    v_bfi_b32 v99, v7, s52, v99
    buffer_store_dwordx4 v[96:99], v102, s[36:39], s43 offen sc1
    L_opoll:
    buffer_load_dwordx4 v[104:107], v103, s[36:39], s42 offen sc1
    buffer_load_dwordx4 v[108:111], v103, s[36:39], s42 offen offset:1024 sc1
    buffer_load_dwordx4 v[112:115], v103, s[36:39], s42 offen offset:2048 sc1
    buffer_load_dwordx4 v[116:119], v103, s[36:39], s42 offen offset:3072 sc1
    s_waitcnt vmcnt(0)
    """)
    tagcheck(range(104, 120), "L_opoll")
    stamp(5)
    A("""
    v_and_b32 v106, s45, v106
    v_and_b32 v110, s45, v110
    v_and_b32 v114, s45, v114
    v_and_b32 v118, s45, v118
    v_max3_f32 v120, v106, v110, v114
    v_max_f32 v120, v120, v118
    v_sub_f32 v106, v106, v120
    v_sub_f32 v110, v110, v120
    v_sub_f32 v114, v114, v120
    v_sub_f32 v118, v118, v120
    v_mul_f32 v106, s46, v106
    v_mul_f32 v110, s46, v110
    v_mul_f32 v114, s46, v114
    v_mul_f32 v118, s46, v118
    v_exp_f32 v106, v106
    v_exp_f32 v110, v110
    v_exp_f32 v114, v114
    v_exp_f32 v118, v118
    v_mul_f32 v107, v107, v106
    v_mul_f32 v104, v104, v106
    v_mul_f32 v105, v105, v106
    v_fmac_f32 v107, v111, v110
    v_fmac_f32 v104, v108, v110
    v_fmac_f32 v105, v109, v110
    v_fmac_f32 v107, v115, v114
    v_fmac_f32 v104, v112, v114
    v_fmac_f32 v105, v113, v114
    v_fmac_f32 v107, v119, v118
    v_fmac_f32 v104, v116, v118
    v_fmac_f32 v105, v117, v118
    v_rcp_f32 v107, v107
    v_mul_f32 v104, v104, v107
    v_mul_f32 v105, v105, v107
    v_cvt_pk_bf16_f32 v120, v104, v105
    s_branch L_core
    L_fphase1:
    s_barrier
    """)
    A("""
    v_lshrrev_b32 v100, 5, v0
    v_and_b32 v101, 31, v0
    v_mul_u32_u24 v100, 5632, v100
    v_lshl_add_u32 v100, v101, 3, v100
    s_lshl_b32 s42, s54, 8
    """)
    A(f"s_add_u32 s42, s42, {GP}")
    A(f"s_mov_b32 s53, {spin_max}")
    A("L_hpoll:")
    A("s_mov_b32 s43, s42")
    hr = [80,82,84,86,88,90,92,94,104,106,108,110,112,114,116,118]
    for k in range(16):
        A(f"buffer_load_dwordx2 v[{hr[k]}:{hr[k]+1}], v100, s[36:39], s43 offen sc1")
        if k < 15: A("s_add_u32 s43, s43, 11264")
    A("s_waitcnt vmcnt(0)")
    tagcheck([x for r in hr for x in (r, r+1)], "L_hpoll")
    for base in (0, 8):
        h = hr[base:base+8]
        for (a, b) in ((0,1),(2,3),(4,5),(6,7),(0,2),(4,6),(0,4)):
            A(f"v_pk_add_f32 v[{h[a]}:{h[a]+1}], v[{h[a]}:{h[a]+1}], v[{h[b]}:{h[b]+1}]")
    A("""
    v_cvt_pk_bf16_f32 v80, v80, v81
    v_cvt_pk_bf16_f32 v104, v104, v105
    v_and_b32 v81, s45, v80
    v_lshlrev_b32 v80, 16, v80
    v_and_b32 v105, s45, v104
    v_lshlrev_b32 v104, 16, v104
    v_mul_f32 v80, s46, v80
    v_mul_f32 v81, s46, v81
    v_exp_f32 v80, -v80
    v_exp_f32 v81, -v81
    v_add_f32 v80, 1.0, v80
    v_add_f32 v81, 1.0, v81
    v_rcp_f32 v80, v80
    v_rcp_f32 v81, v81
    v_cvt_pk_bf16_f32 v80, v80, v81
    v_and_b32 v81, s45, v80
    v_lshlrev_b32 v80, 16, v80
    v_mul_f32 v80, v80, v104
    v_mul_f32 v81, v81, v105
    v_cvt_pk_bf16_f32 v120, v80, v81
    s_branch L_core
    L_post1:
    s_cmp_eq_u32 s3, 0
    s_cbranch_scc0 L_end
    """)
    stamp(6)
    A("""
    v_lshlrev_b32 v100, 10, v0
    v_min_u32 v101, 21, v0
    v_lshlrev_b32 v101, 10, v101
    s_lshr_b32 s42, s2, 7
    s_lshl_b32 s42, s42, 9
    s_and_b32 s43, s2, 31
    s_lshl_b32 s43, s43, 4
    s_add_u32 s42, s42, s43
    s_bfe_u32 s43, s2, 0x20005
    s_mul_i32 s44, s43, 22528
    s_lshl_b32 s43, s43, 16
    s_add_u32 s44, s44, s42
    s_add_u32 s43, s43, s42
    """)
    A(f"s_add_u32 s43, s43, {YA}")
    A(f"s_add_u32 s44, s44, {YF}")
    A(f"s_mov_b32 s53, {spin_max}")
    A("""
    s_mov_b32 s60, s22
    s_mov_b32 s61, s23
    s_mov_b32 s62, 2048
    s_mov_b32 s63, 0x20000
    v_cmp_gt_u32 s[58:59], 22, v0
    L_ypoll:
    buffer_load_dwordx4 v[104:107], v100, s[36:39], s43 offen sc1
    buffer_load_dwordx4 v[108:111], v101, s[36:39], s44 offen sc1
    s_waitcnt vmcnt(0)
    """)
    tagcheck(range(104, 112), "L_ypoll")
    stamp(7)
    for r in range(4): A(f"v_cndmask_b32 v{108+r}, 0, v{108+r}, s[58:59]")
    A("""
    v_permlane32_swap_b32 v104, v105
    v_permlane32_swap_b32 v106, v107
    v_permlane32_swap_b32 v108, v109
    v_permlane32_swap_b32 v110, v111
    v_add_f32 v104, v104, v105
    v_add_f32 v106, v106, v107
    v_add_f32 v108, v108, v109
    v_add_f32 v110, v110, v111
    v_permlane16_swap_b32 v104, v106
    v_permlane16_swap_b32 v108, v110
    v_add_f32 v104, v104, v106
    v_add_f32 v108, v108, v110
    """)
    for sh in (8, 4, 2, 1):
        A(f"v_add_f32_dpp v104, v104, v104 row_ror:{sh} row_mask:0xf bank_mask:0xf")
        A(f"v_add_f32_dpp v108, v108, v108 row_ror:{sh} row_mask:0xf bank_mask:0xf")
    A("""
    v_cvt_pk_bf16_f32 v104, v104, v108
    v_lshlrev_b32 v125, 16, v125
    v_and_b32 v108, s45, v104
    v_lshlrev_b32 v104, 16, v104
    v_add_f32 v104, v125, v104
    v_cvt_pk_bf16_f32 v104, v104, v104
    v_and_b32 v104, s45, v104
    v_add_f32 v104, v104, v108
    v_cvt_pk_bf16_f32 v104, v104, v104
    s_mov_b32 s42, 0x00010001
    s_mov_b32 exec_lo, s42
    s_mov_b32 exec_hi, s42
    buffer_store_short v104, v127, s[60:63], 0 offen
    s_cmp_eq_u32 s2, 0
    s_cbranch_scc0 L_noeps
    v_mov_b32 v100, 0
    v_mov_b32 v101, s56
    buffer_store_dword v101, v100, s[36:39], 0 offen sc1
    L_noeps:
    """)
    if stamps:
        A("s_waitcnt lgkmcnt(0)")
        A(f"s_mul_i32 s47, s2, {NST*8}")
        A("s_add_u32 s47, s47, 0x8000000")
        A("v_mov_b32 v1, s47")
        for i in range(8):
            A(f"v_mov_b32 v2, s{64+2*i}"); A(f"v_mov_b32 v3, s{65+2*i}")
            A(f"global_store_dwordx2 v1, v[2:3], s[26:27] offset:{i*8}")
    A("L_end:")
    A("s_endpgm")
    post = f""".section .rodata,"a"
.p2align 6
.amdhsa_kernel {NAME}_kernel
  .amdhsa_next_free_vgpr 128
  .amdhsa_next_free_sgpr 96
  .amdhsa_accum_offset 128
  .amdhsa_group_segment_fixed_size 0
  .amdhsa_kernarg_size 96
  .amdhsa_user_sgpr_count 2
  .amdhsa_user_sgpr_kernarg_segment_ptr 1
  .amdhsa_system_sgpr_workgroup_id_x 1
.end_amdhsa_kernel
"""
    open(fn, "w").write(pre + A.finish() + post)

if __name__ == "__main__":
    gen("k1.s")
    gen("k1_st.s", stamps=True)
```
